```python
import torch

def _softmax(x, axis=-1):
    return torch.softmax(x, dim=axis)
def _gelu(x):
    return torch.nn.functional.gelu(x, approximate="tanh")
def _silu(x):
    return torch.nn.functional.silu(x)
def _sigmoid(x):
    return torch.sigmoid(x)
def _layernorm(x, axis=-1, eps=1e-5):
    m = x.mean(dim=axis, keepdim=True)
    v = x.var(dim=axis, keepdim=True, unbiased=False)
    return (x - m) / torch.sqrt(v + eps)
def _scatter_add(tgt, idx, src, axis=0):
    return tgt.clone().index_add_(axis, idx, src)
def _segment_sum(src, seg, n):
    out = torch.zeros((n,) + src.shape[1:], dtype=src.dtype)
    return out.index_add_(0, seg, src)
def _pad(x, pw):
    flat = tuple(v for pair in reversed(pw) for v in pair)
    return torch.nn.functional.pad(x, flat)

kernel_name = 'concat_heads__gqa_block_cached__gqa_block_cached__near_ridge'

def setup_inputs():

    _w = (lambda a: (lambda t: t.to(torch.bfloat16) if t.is_floating_point() else t)(torch.as_tensor(a)))
    def _A_setup():
        B, Sq, D = 32, 96, 576
        Hq, Hkv, Sk, Dh = 32, 16, 512, 128
        assert Hq % Hkv == 0, (Hq, Hkv)
        return {
            "x": _w((lambda *s: torch.randn(*s, dtype=torch.bfloat16) * 0.8)(B, Sq, D)),
            "k_cache": _w((lambda *s: torch.randn(*s, dtype=torch.bfloat16) * 0.8)(B, Hkv, Sk, Dh)),
            "v_cache": _w((lambda *s: torch.randn(*s, dtype=torch.bfloat16) * 0.05)(B, Hkv, Sk, Dh)),
            "wq": _w((lambda *s: torch.randn(*s, dtype=torch.bfloat16) * 0.8)(D, Hq * Dh) * (D ** -0.5)),
            "wo": _w((lambda *s: torch.randn(*s, dtype=torch.bfloat16) * 0.05)(Hq * Dh, D) * ((Hq * Dh) ** -0.5)),
        }
    _A_in = _A_setup()

    def _B_setup():
        B, Sq, D = 32, 96, 576
        Hq, Hkv, Sk, Dh = 32, 16, 512, 128
        assert Hq % Hkv == 0, (Hq, Hkv)
        return {
            "x": _w((lambda *s: torch.randn(*s, dtype=torch.bfloat16) * 0.8)(B, Sq, D)),
            "k_cache": _w((lambda *s: torch.randn(*s, dtype=torch.bfloat16) * 0.8)(B, Hkv, Sk, Dh)),
            "v_cache": _w((lambda *s: torch.randn(*s, dtype=torch.bfloat16) * 0.05)(B, Hkv, Sk, Dh)),
            "wq": _w((lambda *s: torch.randn(*s, dtype=torch.bfloat16) * 0.8)(D, Hq * Dh) * (D ** -0.5)),
            "wo": _w((lambda *s: torch.randn(*s, dtype=torch.bfloat16) * 0.05)(Hq * Dh, D) * ((Hq * Dh) ** -0.5)),
        }
    _B_in = _B_setup()

    return {
        "A_x": _A_in["x"],
        "A_k_cache": _A_in["k_cache"],
        "A_v_cache": _A_in["v_cache"],
        "A_wq": _A_in["wq"],
        "A_wo": _A_in["wo"],
        "B_x": _B_in["x"],
        "B_k_cache": _B_in["k_cache"],
        "B_v_cache": _B_in["v_cache"],
        "B_wq": _B_in["wq"],
        "B_wo": _B_in["wo"],
    }

def reference(A_x, A_k_cache, A_v_cache, A_wq, A_wo, B_x, B_k_cache, B_v_cache, B_wq, B_wo):
    def _A_ref(x, k_cache, v_cache, wq, wo):
        B, Sq, D = x.shape
        Hq, Dh = 32, 128
        Hkv = k_cache.shape[1]
        rep = Hq // Hkv
        q = (lambda x, *d: x.permute(*d))((x @ wq).reshape(B, Sq, Hq, Dh), 0, 2, 1, 3)
        k = (lambda x, n, axis: torch.repeat_interleave(x, n, dim=axis))(k_cache, rep, axis=1)
        v = (lambda x, n, axis: torch.repeat_interleave(x, n, dim=axis))(v_cache, rep, axis=1)
        scores = torch.einsum("bhqd,bhkd->bhqk", q, k) * (Dh ** -0.5)
        p = _softmax(scores, axis=-1)
        o = torch.einsum("bhqk,bhkd->bhqd", p, v)
        return (lambda x, *d: x.permute(*d))(o, 0, 2, 1, 3).reshape(B, Sq, Hq * Dh) @ wo

    def _B_ref(x, k_cache, v_cache, wq, wo):
        B, Sq, D = x.shape
        Hq, Dh = 32, 128
        Hkv = k_cache.shape[1]
        rep = Hq // Hkv
        q = (lambda x, *d: x.permute(*d))((x @ wq).reshape(B, Sq, Hq, Dh), 0, 2, 1, 3)
        k = (lambda x, n, axis: torch.repeat_interleave(x, n, dim=axis))(k_cache, rep, axis=1)
        v = (lambda x, n, axis: torch.repeat_interleave(x, n, dim=axis))(v_cache, rep, axis=1)
        scores = torch.einsum("bhqd,bhkd->bhqk", q, k) * (Dh ** -0.5)
        p = _softmax(scores, axis=-1)
        o = torch.einsum("bhqk,bhkd->bhqd", p, v)
        return (lambda x, *d: x.permute(*d))(o, 0, 2, 1, 3).reshape(B, Sq, Hq * Dh) @ wo

    a = _A_ref(A_x, A_k_cache, A_v_cache, A_wq, A_wo)
    b = _B_ref(B_x, B_k_cache, B_v_cache, B_wq, B_wo)
    return torch.concatenate([a, b], axis=-1)
```

```python
class I:
    __slots__ = ('text', 'kind', 'w', 'r', 'c', 'sw', 'sr', 'tag')

    def __init__(self, text, kind, w=(), r=(), c=(), sw=(), sr=(), tag=None):
        self.text = text
        self.kind = kind
        self.w = frozenset(w)
        self.r = frozenset(r)
        self.c = frozenset(c)
        self.sw = frozenset(sw)
        self.sr = frozenset(sr)
        self.tag = tag

    def __repr__(self):
        return self.text


def rng(b, n):
    return range(b, b + n)


def vr(b, n):
    return f'v[{b}:{b + n - 1}]' if n > 1 else f'v{b}'


def mfma(d, a, b, c):
    ct = '0' if c is None else vr(c, 4)
    return I(f'v_mfma_f32_16x16x32_bf16 {vr(d, 4)}, {vr(a, 4)}, {vr(b, 4)}, {ct}', 'mfma',
             w=rng(d, 4), r=list(rng(a, 4)) + list(rng(b, 4)), c=() if c is None else rng(c, 4))


def _srcs(ops):
    r = []
    sr = []
    for o in ops:
        if isinstance(o, int):
            r.append(o)
        elif isinstance(o, str) and o.startswith('s') and o[1:].isdigit():
            sr.append(int(o[1:]))
        elif o == 'vcc':
            sr.append('vcc')
    return r, sr


def _fmt(o):
    return f'v{o}' if isinstance(o, int) else str(o)


TRANS = ('v_exp_f32', 'v_rcp_f32', 'v_log_f32', 'v_rsq_f32', 'v_sqrt_f32')


def valu(op, d, *src, extra_r=()):
    r, sr = _srcs(src)
    kind = 'trans' if op in TRANS else 'valu'
    return I(f'{op} v{d}, ' + ', '.join(_fmt(s) for s in src), kind, w=[d], r=list(r) + list(extra_r), sr=sr)


def vcmp(op, *src):
    r, sr = _srcs(src)
    return I(f'{op} vcc, ' + ', '.join(_fmt(s) for s in src), 'valu', r=r, sr=sr, sw=['vcc'])


def perm(op, a, b):
    return I(f'{op} v{a}, v{b}', 'perm', w=[a, b], r=[a, b])


def readfirstlane(s, v):
    return I(f'v_readfirstlane_b32 s{s}, v{v}', 'rfl', r=[v], sw=[s])


def ds_read128(d, addr, off):
    assert 0 <= off < 65536, off
    return I(f'ds_read_b128 {vr(d, 4)}, v{addr} offset:{off}', 'ldsr', w=rng(d, 4), r=[addr])


def ds_read_tr(d, addr, off):
    assert 0 <= off < 65536, off
    return I(f'ds_read_b64_tr_b16 {vr(d, 2)}, v{addr} offset:{off}', 'ldsr', w=rng(d, 2), r=[addr])


def ds_write128(addr, s, off):
    assert 0 <= off < 65536, off
    return I(f'ds_write_b128 v{addr}, {vr(s, 4)} offset:{off}', 'ldsw', r=[addr] + list(rng(s, 4)))


def salu(text, sw=(), sr=()):
    return I(text, 'salu', sw=sw, sr=sr)


def dma(voff, srd, soff, flags='', tag=None):
    f = (' ' + flags) if flags else ''
    return I(f'buffer_load_dwordx4 v{voff}, s[{srd}:{srd + 3}], s{soff} offen{f} lds', 'dma', r=[voff],
             sr=['m0', soff, srd, srd + 1, srd + 2, srd + 3], tag=tag)


def vload(d, n, voff, srd, soff, off=0, flags='', tag=None):
    op = {1: 'buffer_load_dword', 2: 'buffer_load_dwordx2', 4: 'buffer_load_dwordx4'}[n]
    so = f's{soff}' if isinstance(soff, int) else soff
    o = f' offset:{off}' if off else ''
    f = (' ' + flags) if flags else ''
    return I(f'{op} {vr(d, n)}, v{voff}, s[{srd}:{srd + 3}], {so} offen{o}{f}', 'vmem', w=rng(d, n), r=[voff],
             sr=([soff] if isinstance(soff, int) else []) + [srd, srd + 1, srd + 2, srd + 3], tag=tag)


def vstore(s, n, voff, srd, soff, off=0, flags='', tag=None):
    op = {1: 'buffer_store_dword', 2: 'buffer_store_dwordx2', 4: 'buffer_store_dwordx4'}[n]
    so = f's{soff}' if isinstance(soff, int) else soff
    o = f' offset:{off}' if off else ''
    f = (' ' + flags) if flags else ''
    return I(f'{op} {vr(s, n)}, v{voff}, s[{srd}:{srd + 3}], {so} offen{o}{f}', 'vstore',
             r=[voff] + list(rng(s, n)),
             sr=([soff] if isinstance(soff, int) else []) + [srd, srd + 1, srd + 2, srd + 3], tag=tag)


def label(name):
    return I(f'{name}:', 'label')


def branch(text):
    return I(text, 'branch')


def barrier():
    return I('s_barrier', 'barrier')


def wait_lgkm0():
    return I('s_waitcnt lgkmcnt(0)', 'wait', tag=('lgkm', 0))


def wait_vm(n):
    return I(f's_waitcnt vmcnt({n})', 'wait', tag=('vm', n))


def need_vm(tags):
    return I('', 'needvm', tag=frozenset(tags))


def nop(n):
    return I(f's_nop {n}', 'nop', tag=n)


def comment(t):
    return I(f'; {t}', 'comment')


def interleave(main, fillers):
    by = {}
    for pos, ins in fillers:
        by.setdefault(pos, []).extend(ins if isinstance(ins, list) else [ins])
    out = list(by.get(-1, []))
    for i, m in enumerate(main):
        out.append(m)
        out.extend(by.get(i, []))
    for k in sorted(by):
        if k >= len(main):
            out.extend(by[k])
    return out


def resolve_waits(seq):
    out = []
    lds = []
    vm = []
    for ins in seq:
        if ins.kind == 'needvm':
            last = -1
            for i, (_, t) in enumerate(vm):
                if t in ins.tag:
                    last = i
            if last >= 0:
                n = len(vm) - 1 - last
                n = min(n, 63)
                out.append(wait_vm(n))
                vm = vm[len(vm) - n:] if n else []
            continue
        if ins.kind == 'wait':
            k, n = ins.tag
            if k == 'lgkm':
                lds = lds[len(lds) - n:] if n else []
            else:
                vm = vm[len(vm) - n:] if n else []
            out.append(ins)
            continue
        touched = ins.r | ins.w | ins.c
        if touched:
            last = -1
            for i, d in enumerate(lds):
                if d & touched:
                    last = i
            if last >= 0:
                n = min(len(lds) - 1 - last, 15)
                out.append(I(f's_waitcnt lgkmcnt({n})', 'wait', tag=('lgkm', n)))
                lds = lds[len(lds) - n:] if n else []
            last = -1
            for i, (d, t) in enumerate(vm):
                if d & touched and t != 'prefetch':
                    last = i
            if last >= 0:
                n = min(len(vm) - 1 - last, 63)
                out.append(wait_vm(n))
                vm = vm[len(vm) - n:] if n else []
        if ins.kind == 'ldsr':
            lds.append(ins.w)
        elif ins.kind == 'ldsw':
            lds.append(frozenset())
        elif ins.kind in ('vmem',):
            vm.append((ins.w, ins.tag))
        elif ins.kind in ('dma', 'vstore', 'atomic'):
            vm.append((ins.w if ins.kind == 'atomic' else frozenset(), ins.tag))
        out.append(ins)
    return out


VALU_KINDS = ('valu', 'trans', 'perm', 'rfl')


def states(ins):
    if ins.kind in ('label', 'comment', 'needvm'):
        return 0
    if ins.kind == 'nop':
        return ins.tag + 1
    return 1


def required(p, c):
    need = 0
    pv = p.kind in VALU_KINDS
    cv = c.kind in VALU_KINDS
    if pv and c.kind == 'mfma' and (p.w & (c.r | c.c)):
        need = max(need, 2)
    if p.kind == 'mfma':
        if c.kind == 'mfma':
            if p.w & c.r:
                need = max(need, 8)
            if p.w & c.c and p.w != c.c:
                need = max(need, 6)
            if p.w & c.w and p.w != c.c:
                need = max(need, 6)
        elif cv:
            if p.w & (c.r | c.w):
                need = max(need, 8)
            if p.c & c.w:
                need = max(need, 3)
        elif c.kind in ('ldsr', 'ldsw', 'vmem', 'vstore', 'dma', 'atomic'):
            if p.w & (c.r | c.w):
                need = max(need, 8)
    if p.kind == 'trans' and cv and c.kind != 'trans' and (p.w & (c.r | c.w)):
        need = max(need, 1)
    if p.kind == 'trans' and c.kind in ('ldsw', 'vstore') and (p.w & c.r):
        need = max(need, 1)
    if pv and c.kind == 'perm' and (p.w & c.r):
        need = max(need, 2)
    if pv and c.kind == 'rfl' and (p.w & c.r):
        need = max(need, 1)
    if pv and p.sw:
        if cv and (p.sw & c.sr):
            need = max(need, 2)
        if c.kind in ('vmem', 'vstore', 'dma', 'atomic') and (p.sw & c.sr):
            need = max(need, 5)
        if c.kind == 'salu' and (p.sw & c.sr):
            need = max(need, 2)
    if p.kind == 'salu' and 'm0' in p.sw and c.kind == 'dma':
        need = max(need, 1)
    if p.kind == 'vstore' and cv and (p.r & c.w):
        need = max(need, 2)
    if p.kind == 'vstore' and c.kind in ('ldsr', 'vmem', 'mfma') and (p.r & c.w):
        need = max(need, 1)
    return need


def pad_hazards(seq, window=12):
    out = []
    for ins in seq:
        if ins.kind not in ('label', 'comment', 'nop', 'wait', 'barrier', 'branch'):
            dist = 0
            short = 0
            for p in reversed(out):
                if dist >= window:
                    break
                n = required(p, ins)
                if n > dist:
                    short = max(short, n - dist)
                dist += states(p)
            while short > 0:
                k = min(short, 16)
                out.append(nop(k - 1))
                short -= k
        out.append(ins)
    return out


def render(seq):
    lines = []
    for ins in seq:
        if ins.kind == 'label':
            lines.append(ins.text)
        elif ins.text:
            lines.append('    ' + ins.text)
    return '\n'.join(lines) + '\n'


def finalize(seq):
    return pad_hazards(resolve_waits(seq))
```

```python
import sys
import math
import struct
from asmlib import *

NAME = 'concat_heads__gqa_block_cached__gqa_block_cached__near_ridge'

OBUF = 0
WORING = 49152
AR = WORING + 9 * 4096
LDS_BYTES = AR + 73728
Wslot = [0, 16384, 32768]
XREL = 49152
Xslot = [0, 12288]
Tslot = [0, 16384, 32768, 49152]
KI = 49152


def xslot_of(P):
    return Xslot[(P + 1) & 1]


SX, SK, SV, SWQ, SWO, SOUT, SWS, SDBG = 8, 12, 16, 20, 24, 28, 32, 36
sBLK, sG, sB, sWAVE, sW, sJ = 40, 41, 42, 43, 44, 45
sKV, sWQC, sXB, sW1K = 46, 47, 49, 50
sT0, sT1, sT2 = 51, 52, 53
sTHR, sLO, sNF, sSITE, sSCALE, sGRP = 54, 55, 56, 57, 58, 59
sTAB = 64
sWOB = 73
sP0 = 74
sCNT = 80


def f32(x):
    return '0x%08x' % struct.unpack('<I', struct.pack('<f', x))[0]


SCALE = (128 ** -0.5) * math.log2(math.e)
THR = 256.0

TICKS = ['P'] + [f'Q{s}' for s in range(18)] + ['QC'] + [f'S{t}' for t in range(16)] + ['E1']

DEFAULT_H = {'Q2': ['A0'], 'Q6': ['B0'], 'Q10': ['A1'], 'Q14': ['B1'], 'QC': ['A2'], 'S0': ['B2'], 'S2': ['A3'],
             'S4': ['B3'], 'S6': ['A4'], 'S7': ['B4'], 'S9': ['A5'], 'S10': ['B5'], 'S12': ['A6'], 'S13': ['B6'],
             'S15': ['A7'], 'E1': ['B7']}


class Cfg:
    hs = DEFAULT_H
    prio_a = 2
    kv_flags = 'nt'
    prefetch = True
    stamps = False


def prologue():
    s = []
    a = s.append
    a(salu('s_cmp_ge_u32 s2, 256'))
    a(branch('s_cbranch_scc1 L_done'))
    a(I('s_load_dwordx16 s[64:79], s[0:1], 0', 'other'))
    a(I('s_load_dwordx8 s[80:87], s[0:1], 64', 'other'))
    a(I('s_load_dwordx2 s[88:89], s[0:1], 96', 'other'))
    a(valu('v_lshrrev_b32', 1, '6', 0))
    a(salu(f's_and_b32 s{sG}, s2, 3'))
    a(salu(f's_bfe_u32 s{sBLK}, s2, 0x10002'))
    a(salu(f's_lshr_b32 s{sB}, s2, 3'))
    a(readfirstlane(sWAVE, 1))
    a(valu('v_and_b32', 0, '63', 0))
    a(nop(3))
    a(salu(f's_and_b32 s{sW}, s{sWAVE}, 3', sr=[sWAVE]))
    a(salu(f's_lshl_b32 s{sW1K}, s{sW}, 10'))
    a(salu(f's_mul_i32 s{sXB}, s{sB}, 110592'))
    a(salu(f's_lshl_b32 s{sGRP}, s{sBLK}, 5'))
    a(salu(f's_add_u32 s{sGRP}, s{sGRP}, s{sB}'))
    a(salu(f's_mov_b32 s{sJ}, 0'))
    a(I('s_waitcnt lgkmcnt(0)', 'other'))
    a(salu(f's_cmp_eq_u32 s{sBLK}, 0'))
    for srd, pa, pb, size in ((SX, 64, 74, 3538944), (SK, 66, 76, 67108864), (SV, 68, 78, 67108864),
                              (SWQ, 70, 80, 4718592), (SWO, 72, 82, 4718592)):
        a(salu(f's_cselect_b32 s{srd}, s{pa}, s{pb}'))
        a(salu(f's_cselect_b32 s{srd + 1}, s{pa + 1}, s{pb + 1}'))
        a(salu(f's_mov_b32 s{srd + 2}, {size}'))
        a(salu(f's_mov_b32 s{srd + 3}, 0x00020000'))
    for srd, p, size in ((SOUT, 84, 7077888), (SDBG, 86, 256), (SWS, 88, 294387712)):
        a(salu(f's_mov_b32 s{srd}, s{p}'))
        a(salu(f's_mov_b32 s{srd + 1}, s{p + 1}'))
        a(salu(f's_mov_b32 s{srd + 2}, {size}'))
        a(salu(f's_mov_b32 s{srd + 3}, 0x00020000'))
    a(salu(f's_lshl_b32 s{sWQC}, s{sG}, 11'))
    a(salu(f's_cmp_ge_u32 s{sWAVE}, 4'))
    a(branch('s_cbranch_scc1 L_G'))
    return s


def dma_ins(m0_const, srd, voff, sbase, soff_const, flags='', tag=None, add_w1k=True):
    r = []
    r.append(salu(f's_add_u32 m0, s{sW1K}, {m0_const}', sw=['m0']))
    r.append(salu(f's_add_u32 s{sT0}, s{sbase}, {soff_const & 0xffffffff}', sw=[sT0]))
    r.append(dma(voff, srd, sT0, flags, tag))
    return r


ACC = lambda dt, q: (dt * 3 + q) * 4
QF = lambda ks, q: 96 + (ks * 3 + q) * 4
NEGM = lambda q: 144 + 4 * q
S_ = lambda q, kt: 156 + q * 8 + kt * 4
F_ = lambda i: 180 + 4 * i
E_ = lambda i: 212 + i
L_ = lambda q: 220 + q
LS = 223
T_ = lambda i: 224 + i
KA = [228, 229]
VA = [230, 231, 232, 233]
WA = [234, 235, 236, 237]
XA = [238, 239]
OA_A = 240
vK, vV, vPQ, vLIN, vDUM = 241, 242, 243, 244, 245
RINV = lambda q: 246 + q
QKORD = [(kt, ks) for ks in range(4) for kt in range(2)]


def Wset(par, dt):
    return F_(dt) if par == 0 else 96 + 4 * dt


def Xset(par, q):
    return 156 + 4 * q if par == 0 else 128 + 4 * q


def a_consts():
    s = []
    a = s.append
    t0, t1, t2, t3 = T_(0), T_(1), T_(2), T_(3)
    lane = E_(0)
    a(valu('v_mov_b32', lane, 0))
    a(valu('v_and_b32', t0, '15', lane))
    a(valu('v_lshrrev_b32', t1, '4', lane))
    a(valu('v_lshrrev_b32', t2, '1', t0))
    a(valu('v_xor_b32', t3, t1, t2))
    a(valu('v_lshlrev_b32', t3, '4', t3))
    a(valu('v_lshl_add_u32', KA[0], t0, '7', t3))
    a(valu('v_xor_b32', KA[1], '64', KA[0]))
    a(salu(f's_and_b32 s{sT0}, s{sW}, 1'))
    a(salu(f's_mul_i32 s{sT0}, s{sT0}, 6144'))
    a(salu(f's_add_u32 s{sT0}, s{sT0}, {AR + XREL}'))
    a(valu('v_add_u32', XA[0], f's{sT0}', KA[0]))
    a(valu('v_add_u32', XA[1], f's{sT0}', KA[1]))
    a(valu('v_add_u32', KA[0], str(AR), KA[0]))
    a(valu('v_add_u32', KA[1], str(AR), KA[1]))
    r4, c = E_(1), E_(2)
    a(valu('v_bfe_u32', r4, lane, '2', '2'))
    a(valu('v_and_b32', c, '3', lane))
    x2 = E_(3)
    a(valu('v_and_b32', t2, '1', t1))
    a(valu('v_lshlrev_b32', t2, '1', t2))
    a(valu('v_lshrrev_b32', t3, '1', r4))
    a(valu('v_or_b32', x2, t2, t3))
    a(valu('v_lshrrev_b32', t2, '2', lane))
    a(valu('v_lshlrev_b32', t2, '7', t2))
    a(valu('v_lshl_add_u32', t2, c, '3', t2))
    a(valu('v_add_u32', t2, str(AR), t2))
    a(valu('v_lshl_add_u32', t3, t1, '3', r4))
    a(valu('v_lshlrev_b32', t3, '7', t3))
    a(valu('v_lshl_add_u32', t3, c, '3', t3))
    a(salu(f's_lshr_b32 s{sT0}, s{sW}, 1'))
    a(salu(f's_lshl_b32 s{sT0}, s{sT0}, 13'))
    a(salu(f's_add_u32 s{sT0}, s{sT0}, {AR}'))
    a(valu('v_add_u32', t3, f's{sT0}', t3))
    for p in range(4):
        a(valu('v_xor_b32', t0, str(p), x2))
        a(valu('v_lshl_add_u32', VA[p], t0, '5', t2))
        a(valu('v_lshl_add_u32', WA[p], t0, '5', t3))
    a(salu(f's_lshr_b32 s{sT0}, s{sW}, 1'))
    a(salu(f's_mul_i32 s{sT0}, s{sT0}, 24'))
    a(salu(f's_and_b32 s{sT1}, s{sW}, 1'))
    a(salu(f's_mul_i32 s{sT1}, s{sT1}, 3'))
    a(salu(f's_add_u32 s{sT0}, s{sT0}, s{sT1}'))
    a(salu(f's_lshl_b32 s{sT0}, s{sT0}, 10'))
    a(valu('v_lshlrev_b32', t0, '4', lane))
    a(valu('v_add_u32', OA_A, f's{sT0}', t0))
    r8, sl = E_(4), E_(5)
    a(valu('v_lshrrev_b32', r8, '3', lane))
    a(valu('v_and_b32', sl, '7', lane))
    a(salu(f's_lshl_b32 s{sT0}, s{sW}, 11'))
    a(valu('v_lshlrev_b32', t0, '8', r8))
    a(valu('v_add_u32', t0, f's{sT0}', t0))
    a(valu('v_and_b32', t2, '6', r8))
    a(valu('v_xor_b32', t2, sl, t2))
    a(valu('v_lshl_add_u32', vV, t2, '4', t0))
    a(salu(f's_and_b32 s{sT1}, s{sW}, 1'))
    a(salu(f's_lshl_b32 s{sT1}, s{sT1}, 2'))
    a(valu('v_or_b32', t2, f's{sT1}', t1))
    a(valu('v_xor_b32', t2, sl, t2))
    a(valu('v_lshl_add_u32', vK, t2, '4', t0))
    a(salu(f's_lshl_b32 s{sT0}, s{sW}, 6'))
    a(valu('v_add_u32', t0, f's{sT0}', lane))
    a(valu('v_lshlrev_b32', vLIN, '6', t0))
    a(valu('v_lshrrev_b32', t2, '3', t0))
    a(salu(f's_mul_i32 s{sT0}, s{sB}, 18'))
    a(valu('v_add_u32', t2, f's{sT0}', t2))
    a(valu('v_lshlrev_b32', t2, '13', t2))
    a(valu('v_and_b32', t3, '7', t0))
    a(valu('v_lshl_add_u32', vPQ, t3, '6', t2))
    a(salu(f's_lshl_b32 s{sT0}, s{sB}, 4'))
    a(salu(f's_lshl_b32 s{sT1}, s{sG}, 2'))
    a(salu(f's_add_u32 s{sT0}, s{sT0}, s{sT1}'))
    a(salu(f's_lshl_b32 s{sKV}, s{sT0}, 17'))
    a(salu(f's_mov_b32 s{sSCALE}, {f32(SCALE)}'))
    a(salu(f's_mul_i32 s{sWOB}, s{sG}, {4 * 294912}'))
    a(salu(f's_mul_i32 s{sT0}, s{sB}, 9216'))
    a(salu(f's_add_u32 s{sWOB}, s{sWOB}, s{sT0}'))
    return s


def pf_wq(delta):
    return [salu(f's_add_u32 s{sT0}, s{sWQC}, {delta}', sw=[sT0]),
            vload(vDUM, 1, vPQ, SWQ, sT0, tag='prefetch')]


def pf_wo(delta):
    return [salu(f's_add_u32 s{sT0}, s{sWOB}, {delta}', sw=[sT0]),
            vload(vDUM, 1, vLIN, SWO, sT0, tag='prefetch')]


def pf_x():
    r = []
    for i in range(7):
        r += [salu(f's_add_u32 s{sT0}, s{sXB}, {i * 16384}', sw=[sT0]),
              vload(vDUM, 1, vLIN, SX, sT0, tag='prefetch')]
    return r


def kv_dma(which, step, dst_rel, tag):
    r = []
    srd, vo = (SK, vK) if which == 'K' else (SV, vV)
    for pn in range(2):
        r += dma_ins(AR + dst_rel + pn * 4096, srd, vo, sKV, step * 8192 + pn * 128, Cfg.kv_flags, tag)
    return r


def stage_dma(t):
    r = kv_dma('V', t, Tslot[t & 3], ('st', t))
    if t < 15:
        r += kv_dma('K', t + 1, Tslot[t & 3] + 8192, ('st', t))
    return r


def q_reads(s):
    par = s & 1
    r = []
    xs = [ds_read128(Xset(par, q), XA[s & 1], xslot_of(s >> 1) + q * 2048) for q in range(3)]
    ws = []
    for dt in range(8):
        base = Wslot[s % 3] + (dt >> 2) * 4096
        ws.append([ds_read_tr(Wset(par, dt), WA[dt & 3], base), ds_read_tr(Wset(par, dt) + 2, WA[dt & 3], base + 512)])
    r = [xs[0]] + ws[0] + [xs[1], xs[2]]
    for dt in range(1, 8):
        r += ws[dt]
    return r


def k_read(i, rel):
    kt, ks = QKORD[i]
    return ds_read128(F_(i), KA[ks & 1], rel + (ks >> 1) * 4096 + kt * 2048)


def v_read(dt, rel):
    base = rel + (dt >> 2) * 4096
    return [ds_read_tr(F_(dt), VA[dt & 3], base), ds_read_tr(F_(dt) + 2, VA[dt & 3], base + 2048)]


def qk(q):
    r = []
    for i, (kt, ks) in enumerate(QKORD):
        r.append(mfma(S_(q, kt), F_(i), QF(ks, q), NEGM(q) if ks == 0 else S_(q, kt)))
    return r


def pv(q):
    return [mfma(ACC(dt, q), F_(dt), S_(q, 0), ACC(dt, q)) for dt in range(8)]


def softmax_parts(q, site):
    pre = []
    for i in range(8):
        pre.append(valu('v_exp_f32', E_(i), S_(q, 0) + i))
    adds = [valu('v_add_f32', T_(0), E_(0), E_(1)), valu('v_add_f32', T_(1), E_(2), E_(3)),
            valu('v_add_f32', T_(2), E_(4), E_(5)), valu('v_add_f32', T_(0), T_(0), T_(1)),
            valu('v_add_f32', T_(3), E_(6), E_(7)), valu('v_add_f32', T_(0), T_(0), T_(2)),
            valu('v_add_f32', LS, T_(0), T_(3))]
    seq = pre[:4] + [adds[0]] + [pre[4]] + [adds[1]] + [pre[5]] + [pre[6]] + [adds[2], adds[3]] + [pre[7]] + \
        [salu(f's_mov_b32 s{sSITE}, {site}'), adds[5], adds[4], adds[6], vcmp('v_cmp_lt_f32', f's{sTHR}', LS)]
    post = [branch(f's_cbranch_vccnz L_fix{q}'), label(f'L_ret{q}_{site}')]
    post += [valu('v_cvt_pk_bf16_f32', S_(q, 0) + i, E_(2 * i), E_(2 * i + 1)) for i in range(4)]
    post += [valu('v_add_f32', L_(q), L_(q), LS)]
    return seq, post


def xlane(op, v, tmp):
    return [valu('v_mov_b32', tmp, v), perm('v_permlane32_swap_b32', v, tmp), valu(op, v, v, tmp),
            valu('v_mov_b32', tmp, v), perm('v_permlane16_swap_b32', v, tmp), valu(op, v, v, tmp)]


def fix_handler(q, nsites):
    s = [label(f'L_fix{q}'), nop(7), nop(7)]
    a = s.append
    b = S_(q, 0)
    mx, tmp, f = T_(0), T_(1), T_(2)
    a(valu('v_max3_f32', mx, b, b + 1, b + 2))
    a(valu('v_max3_f32', tmp, b + 3, b + 4, b + 5))
    a(valu('v_max3_f32', mx, mx, b + 6, b + 7))
    a(valu('v_max_f32', mx, mx, tmp))
    s += xlane('v_max_f32', mx, tmp)
    a(valu('v_max_f32', mx, f's{sLO}', mx))
    a(valu('v_max_f32', f, '0', mx))
    a(valu('v_sub_f32', f, '0', f))
    a(valu('v_exp_f32', f, f))
    a(valu('v_mul_f32', f, f's{sNF}', f))
    for i in range(8):
        a(valu('v_sub_f32', E_(i), b + i, mx))
    for i in range(8):
        a(valu('v_exp_f32', E_(i), E_(i)))
    for dt in range(8):
        for r in range(4):
            a(valu('v_mul_f32', ACC(dt, q) + r, ACC(dt, q) + r, f))
    a(valu('v_mul_f32', L_(q), L_(q), f))
    for r in range(4):
        a(valu('v_sub_f32', NEGM(q) + r, NEGM(q) + r, mx))
    a(valu('v_add_f32', LS, E_(0), E_(1)))
    for i in range(2, 8):
        a(valu('v_add_f32', LS, LS, E_(i)))
    a(nop(3))
    for k in range(nsites - 1):
        a(salu(f's_cmp_eq_u32 s{sSITE}, {k}'))
        a(branch(f's_cbranch_scc1 L_ret{q}_{k}'))
    a(branch(f's_branch L_ret{q}_{nsites - 1}'))
    return s


def spread(items, lo, hi):
    n = len(items)
    return [(lo + (i * (hi - lo + 1)) // n, it) for i, it in enumerate(items)]


def gen_A():
    s = []
    a = s.append
    a(I(f's_setprio {Cfg.prio_a}', 'other'))
    s += a_consts()
    if Cfg.prefetch:
        s += pf_wq(0) + pf_x() + pf_wo(0)
    for r in range(12):
        a(valu('v_mov_b32', NEGM(0) + r, '0'))
    a(label('L_A_loop'))
    a(barrier())
    for q in range(3):
        a(ds_write128(OA_A, NEGM(q), (3 * 6 + q) * 1024))
    s += q_reads(0)
    a(wait_lgkm0())
    for st in range(18):
        a(barrier())
        par = st & 1
        pre = []
        if st == 15:
            pre = kv_dma('K', 0, KI, 'k0') + stage_dma(0)
        elif st == 16:
            pre = stage_dma(1)
        elif st == 17:
            pre = stage_dma(2)
        main = [mfma(ACC(dt, q), Wset(par, dt), Xset(par, q), None if st == 0 else ACC(dt, q))
                for dt in range(8) for q in range(3)]
        fill = []
        if st < 17:
            fill += [(i, ins) for i, ins in enumerate(q_reads(st + 1))]
        for i in range(0, len(pre), 3):
            fill.append((min(23, 2 + (i // 3) * 3), pre[i:i + 3]))
        s += interleave(main, fill)
        if st == 17:
            a(need_vm(['k0']))
        a(wait_lgkm0())
    a(barrier())
    for i in range(8):
        a(k_read(i, KI))
    a(salu(f's_mov_b32 s{sTHR}, -1.0'))
    a(salu(f's_mov_b32 s{sLO}, 0xff800000'))
    a(salu(f's_mov_b32 s{sNF}, 0'))
    for r in range(12):
        a(valu('v_mov_b32', NEGM(0) + r, '0'))
    for q in range(3):
        a(valu('v_mov_b32', L_(q), '0'))

    def conv(q):
        r = []
        for ks in range(4):
            for h in range(2):
                bb = ACC(2 * ks + h, q)
                for e in range(4):
                    r.append(valu('v_mul_f32', bb + e, f's{sSCALE}', bb + e))
            d = QF(ks, q)
            for h in range(2):
                bb = ACC(2 * ks + h, q)
                r.append(valu('v_cvt_pk_bf16_f32', d + 2 * h, bb, bb + 1))
                r.append(valu('v_cvt_pk_bf16_f32', d + 2 * h + 1, bb + 2, bb + 3))
        for ks in range(4):
            d = QF(ks, q)
            r.append(perm('v_permlane32_swap_b32', d, d + 2))
            r.append(perm('v_permlane32_swap_b32', d + 1, d + 3))
        for ks in range(4):
            d = QF(ks, q)
            r.append(perm('v_permlane16_swap_b32', d, d + 2))
            r.append(perm('v_permlane16_swap_b32', d + 1, d + 3))
        return r
    s += conv(0)
    rest = conv(1) + conv(2)
    s += interleave(qk(0), spread(rest, 0, 7))
    a(need_vm([('st', 0)]))
    a(wait_lgkm0())
    for t in range(16):
        a(barrier())
        rel = Tslot[t & 3]
        main = qk(1) + qk(2) + pv(0) + pv(1) + pv(2) + (qk(0) if t < 15 else [])
        fill = []
        wins = [(-1, 8), (10, 19), (21, 30)]
        for q in range(3):
            pre, post = softmax_parts(q, t)
            lo, hi = wins[q]
            n = len(pre)
            fill += spread(pre, lo, hi - 3)
            fill += [(hi - 1, post[0:2])] + spread(post[2:], hi - 1, hi)
        if t == 0:
            fill.append((31, [salu(f's_mov_b32 s{sTHR}, {f32(THR)}'), salu(f's_mov_b32 s{sLO}, 0'),
                              salu(f's_mov_b32 s{sNF}, 1.0')]))
        for dt in range(8):
            fill.append((8 + dt, v_read(dt, rel)))
        if t < 15:
            for i in range(8):
                fill.append((32 + i, k_read(i, rel + 8192)))
        d = []
        if t + 3 <= 15:
            d = stage_dma(t + 3)
        if Cfg.prefetch:
            if t == 3:
                d = d + pf_wq(512)
            if t == 5:
                d = d + pf_wo(294912)
            if t == 7:
                d = d + pf_x()
        grp = []
        cur = []
        for ins in d:
            cur.append(ins)
            if ins.kind in ('dma', 'vmem'):
                grp.append(cur)
                cur = []
        for i, gI in enumerate(grp):
            fill.append((32 + (i * 15) // max(1, len(grp)), gI))
        fill.sort(key=lambda x: x[0])
        s += interleave(main, fill)
        if t < 15:
            a(need_vm([('st', t + 1)]))
        a(wait_lgkm0())
    a(barrier())
    for q in range(3):
        s += xlane('v_add_f32', L_(q), T_(q))
    for q in range(3):
        a(valu('v_rcp_f32', RINV(q), L_(q)))
    k = 0
    for cs in range(4):
        for q in range(3):
            dst = NEGM(q) if cs == 3 else F_(k % 8)
            k += 1
            for h in range(2):
                bb = ACC(2 * cs + h, q)
                for e in range(4):
                    a(valu('v_mul_f32', bb + e, bb + e, RINV(q)))
            for h in range(2):
                bb = ACC(2 * cs + h, q)
                a(valu('v_cvt_pk_bf16_f32', dst + 2 * h, bb, bb + 1))
                a(valu('v_cvt_pk_bf16_f32', dst + 2 * h + 1, bb + 2, bb + 3))
            if cs < 3:
                a(ds_write128(OA_A, dst, (cs * 6 + q) * 1024))
    a(salu(f's_add_u32 s{sKV}, s{sKV}, 131072'))
    a(salu(f's_add_u32 s{sWQC}, s{sWQC}, 512'))
    a(salu(f's_add_u32 s{sWOB}, s{sWOB}, 294912'))
    a(salu(f's_add_u32 s{sJ}, s{sJ}, 1'))
    a(wait_lgkm0())
    a(salu(f's_cmp_lt_u32 s{sJ}, 4'))
    a(branch('s_cbranch_scc1 L_A_loop'))
    a(barrier())
    for q in range(3):
        a(ds_write128(OA_A, NEGM(q), (3 * 6 + q) * 1024))
    a(wait_lgkm0())
    a(barrier())
    a(I('s_endpgm', 'other'))
    body = finalize(s)
    for q in range(3):
        body += finalize(fix_handler(q, 16))
    return body


OUT = lambda p, qt: (p * 6 + qt) * 4
BF = lambda qt: 216 + 4 * qt
AF = lambda i: 240 + 4 * i
WOA, OA_G, vWQ, vX, vWO = 248, 249, 250, 251, 252
G0, G1, G2 = 253, 254, 255
KAPPA = [(k & 1, k >> 1) for k in range(8)]


def g_consts():
    s = []
    a = s.append
    lane = BF(0)
    t0, t1, t2, t3, gq, r4, c, x2, r8, sl = [BF(0) + i for i in range(1, 11)]
    a(valu('v_mov_b32', lane, 0))
    a(valu('v_lshrrev_b32', gq, '4', lane))
    a(valu('v_bfe_u32', r4, lane, '2', '2'))
    a(valu('v_and_b32', c, '3', lane))
    a(valu('v_and_b32', t2, '1', gq))
    a(valu('v_lshlrev_b32', t2, '1', t2))
    a(valu('v_lshrrev_b32', t3, '1', r4))
    a(valu('v_or_b32', x2, t2, t3))
    a(valu('v_lshrrev_b32', t2, '2', lane))
    a(valu('v_lshlrev_b32', t2, '7', t2))
    a(valu('v_lshl_add_u32', t2, c, '3', t2))
    a(valu('v_add_u32', t2, str(WORING), t2))
    a(valu('v_xor_b32', t0, f's{sW}', x2))
    a(valu('v_lshl_add_u32', WOA, t0, '5', t2))
    a(valu('v_lshlrev_b32', OA_G, '4', lane))
    a(valu('v_lshrrev_b32', r8, '3', lane))
    a(valu('v_and_b32', sl, '7', lane))
    a(salu(f's_lshl_b32 s{sT0}, s{sW}, 3'))
    a(valu('v_add_u32', t0, f's{sT0}', r8))
    a(valu('v_and_b32', t1, '1', gq))
    a(salu(f's_and_b32 s{sT1}, s{sW}, 1'))
    a(salu(f's_lshl_b32 s{sT2}, s{sT1}, 1'))
    a(valu('v_or_b32', t1, f's{sT2}', t1))
    a(valu('v_lshlrev_b32', t1, '1', t1))
    a(valu('v_xor_b32', t1, sl, t1))
    a(valu('v_lshlrev_b32', t2, '13', t0))
    a(valu('v_lshl_add_u32', vWQ, t1, '4', t2))
    a(salu(f's_movk_i32 s{sT0}, 1152'))
    a(valu('v_mul_lo_u32', t2, t0, f's{sT0}'))
    a(salu(f's_lshl_b32 s{sT2}, s{sT1}, 2'))
    a(valu('v_or_b32', t1, f's{sT2}', gq))
    a(valu('v_xor_b32', t1, sl, t1))
    a(valu('v_lshl_add_u32', vX, t1, '4', t2))
    a(valu('v_and_b32', t1, '6', r8))
    a(valu('v_xor_b32', t1, sl, t1))
    a(valu('v_lshl_add_u32', vWO, t1, '4', t2))
    a(salu(f's_lshl_b32 s{sT0}, s{sG}, 2'))
    a(salu(f's_sub_u32 s{sT0}, s{sT0}, 1'))
    a(salu(f's_mul_i32 s{sWOB}, s{sT0}, 294912'))
    for p in range(8):
        a(salu(f's_add_u32 s{sT0}, s{sG}, {1 + (p >> 1)}'))
        a(salu(f's_and_b32 s{sT0}, s{sT0}, 3'))
        a(salu(f's_lshl_b32 s{sT0}, s{sT0}, 8'))
        a(salu(f's_add_u32 s{sT0}, s{sT0}, {(p & 1) * 128}'))
        a(salu(f's_add_u32 s{sTAB + p}, s{sWOB}, s{sT0}'))
    a(salu(f's_add_u32 s{sTAB + 8}, s{sWOB}, 1024'))
    return s


def wq_dma(st, nxt):
    r = []
    for pn in range(4):
        r += dma_ins(AR + Wslot[st % 3] + pn * 4096, SWQ, vWQ, sWQC, st * 32 * 8192 + pn * 128 + (512 if nxt else 0),
                     '', ('wq', st, nxt))
    return r


def x_dma(P, nxt):
    r = []
    for i in range(3):
        r += dma_ins(AR + XREL + xslot_of(P) + i * 4096, SX, vX, sXB, P * 128 + i * 32 * 1152, '', ('xp', P, nxt))
    return r


def half_panels(h):
    return range(0, 5) if h == 'A' else range(5, 9)


def wo_dma_panel(p, kappa, slot_addr, nxt, tag):
    hh, cs = KAPPA[kappa]
    return dma_ins(slot_addr, SWO, vWO, sTAB + p, (hh * 128 + cs * 32) * 1152 + (294912 if nxt else 0), '', tag)


def wo_dma(kappa, h, nxt):
    r = []
    for p in half_panels(h):
        r += wo_dma_panel(p, kappa, WORING + p * 4096, nxt, ('wo', kappa, h, nxt))
    return r


def b_reads(kappa):
    hh, cs = KAPPA[kappa]
    return [ds_read128(BF(qt), OA_G, (hh * 4 + cs) * 6144 + qt * 1024) for qt in range(6)]


def a_read(i, off):
    return [ds_read_tr(AF(i), WOA, off), ds_read_tr(AF(i) + 2, WOA, off + 2048)]


def panels_mm(plist, offs, first_reads):
    s = list(first_reads)
    s += a_read(0, offs[0])
    for n, p in enumerate(plist):
        mm = [mfma(OUT(p, qt), AF(n & 1), BF(qt), OUT(p, qt)) for qt in range(6)]
        if n + 1 < len(plist):
            s += a_read((n + 1) & 1, offs[n + 1])
        s += mm
    return s


def h_item(name):
    h, kappa = name[0], int(name[1:])
    pl = list(half_panels(h))
    return panels_mm(pl, [p * 4096 for p in pl], b_reads(kappa) if h == 'A' else [])


def g_iter(oproj):
    hs = Cfg.hs if oproj else {}
    tick_of = {it: TICKS.index(t) for t, l in Cfg.hs.items() for it in l}
    s = []
    a = s.append
    for ti, tk in enumerate(TICKS):
        a(comment(f'G tick {tk}'))
        a(barrier())
        d = []
        if tk == 'P':
            d += x_dma(1, False)
        if tk[0] == 'Q' and tk != 'QC':
            st = int(tk[1:])
            if st + 3 <= 17:
                d += wq_dma(st + 3, False)
            if st & 1 and (st - 1) // 2 + 2 <= 8:
                d += x_dma((st - 1) // 2 + 2, False)
        if tk == 'S12':
            d += x_dma(0, True)
        if tk in ('S13', 'S14', 'S15'):
            d += wq_dma(int(tk[1:]) - 13, True)
        for it, tt in tick_of.items():
            h, kappa = it[0], int(it[1:])
            if (tt + 1) % len(TICKS) == ti:
                wrapped = tt + 1 == len(TICKS)
                if kappa < 7:
                    if oproj:
                        d += wo_dma(kappa + 1, h, False)
                elif wrapped:
                    if oproj:
                        d += wo_dma(0, h, False)
                else:
                    d += wo_dma(0, h, True)
        s += d
        for it in hs.get(tk, []):
            s += h_item(it)
        if ti + 1 < len(TICKS):
            nt = TICKS[ti + 1]
            need = []
            if nt[0] == 'Q' and nt != 'QC':
                st = int(nt[1:])
                need += [('wq', st + 1, False), ('xp', (st + 1) // 2, False)]
            for it in hs.get(nt, []):
                need.append(('wo', int(it[1:]), it[0], False))
            a(need_vm(need))
            a(wait_lgkm0())
        else:
            a(wait_vm(0))
            a(wait_lgkm0())
    a(salu(f's_add_u32 s{sWQC}, s{sWQC}, 512'))
    for p in range(9):
        a(salu(f's_add_u32 s{sTAB + p}, s{sTAB + p}, 294912'))
    return s


TAIL_BLOCKS = [[8, 0, 1], [2, 3], [4, 5], [6, 7]]
NGRP = 5


def g_tail():
    s = []
    a = s.append
    ticks = [(bi, kappa) for bi in range(4) for kappa in range(8)]

    def tdma(n):
        bi, kappa = ticks[n]
        r = []
        for i, p in enumerate(TAIL_BLOCKS[bi]):
            r += wo_dma_panel(p, kappa, WORING + ((n % NGRP) * 3 + i) * 4096, False, ('t', n))
        return r
    a(salu(f's_mul_i32 s{sT1}, s{sG}, {4 * 18432}'))
    a(salu(f's_mul_i32 s{sT2}, s{sW}, 18432'))
    a(salu(f's_add_u32 s{sT1}, s{sT1}, s{sT2}'))
    a(salu(f's_mul_i32 s{sT2}, s{sGRP}, {16 * 4 * 18432}'))
    a(salu(f's_add_u32 s{sT1}, s{sT1}, s{sT2}'))
    for i in range(3):
        a(salu(f's_add_u32 s{sT0}, s{sG}, {1 + i}'))
        a(salu(f's_and_b32 s{sT0}, s{sT0}, 3'))
        a(salu(f's_mul_i32 s{sT0}, s{sT0}, {16 * 18432}'))
        a(salu(f's_add_u32 s{sP0 + i}, s{sT1}, s{sT0}'))
    a(salu(f's_mul_i32 s{sT0}, s{sW}, {16 * 18432}'))
    a(salu(f's_add_u32 s{sP0 + 3}, s{sT1}, s{sT0}'))
    a(barrier())
    for n in range(NGRP - 1):
        s += tdma(n)
    a(need_vm([('t', 0)]))
    for n, (bi, kappa) in enumerate(ticks):
        a(barrier())
        if n + NGRP - 1 < len(ticks):
            s += tdma(n + NGRP - 1)
        pl = TAIL_BLOCKS[bi]
        s += panels_mm(pl, [((n % NGRP) * 3 + i) * 4096 for i in range(len(pl))], b_reads(kappa))
        if kappa == 7 and bi < 3:
            for i, p in enumerate(pl):
                for qt in range(6):
                    if p == 8:
                        base, tile = sP0 + 3, 12 + qt
                    else:
                        base, tile = sP0 + bi, (p & 1) * 6 + qt
                    a(salu(f's_add_u32 s{sT0}, s{base}, {tile * 1024}', sw=[sT0]))
                    a(vstore(OUT(p, qt), 4, OA_G, SWS, sT0, flags='sc1', tag='pst'))
        if n + 1 < len(ticks):
            a(need_vm([('t', n + 1)]))
        a(wait_lgkm0())
    a(wait_vm(0))
    a(salu(f's_lshl_b32 s{sT0}, s{sG}, 3'))
    a(salu(f's_lshl_b32 s{sT1}, 1, s{sT0}'))
    a(salu(f's_sub_u32 s{sT1}, 0x01010101, s{sT1}'))
    a(salu(f's_lshl_b32 s{sT2}, s{sGRP}, 2'))
    a(valu('v_mov_b32', G0, f's{sT1}'))
    a(valu('v_mov_b32', G1, f's{sT2}'))
    a(salu('s_mov_b64 exec, 1'))
    a(I(f'buffer_atomic_add v{G0}, v{G1}, s[{SDBG}:{SDBG + 3}], 0 offen sc1', 'vstore', r=[G0, G1]))
    a(salu(f's_mov_b32 s{sCNT}, 0'))
    a(label('L_poll'))
    a(vload(G2, 1, G1, SDBG, '0', flags='sc1'))
    a(wait_vm(0))
    a(readfirstlane(sT1, G2))
    a(nop(3))
    a(salu(f's_lshr_b32 s{sT1}, s{sT1}, s{sT0}'))
    a(salu(f's_and_b32 s{sT1}, s{sT1}, 0xff'))
    a(salu(f's_cmp_ge_u32 s{sT1}, 12'))
    a(branch('s_cbranch_scc1 L_polled'))
    a(I('s_sleep 2', 'other'))
    a(salu(f's_add_u32 s{sCNT}, s{sCNT}, 1'))
    a(salu(f's_cmp_lt_u32 s{sCNT}, 2000000'))
    a(branch('s_cbranch_scc1 L_poll'))
    a(label('L_polled'))
    a(salu('s_mov_b64 exec, -1'))
    a(barrier())
    a(salu(f's_mul_i32 s{sT1}, s{sGRP}, {16 * 4 * 18432}'))
    a(salu(f's_mul_i32 s{sT2}, s{sG}, {16 * 18432}'))
    a(salu(f's_add_u32 s{sT1}, s{sT1}, s{sT2}'))
    a(salu(f's_mul_i32 s{sT2}, s{sW}, 18432'))
    a(salu(f's_add_u32 s{sT1}, s{sT1}, s{sT2}'))
    for i in range(3):
        a(salu(f's_add_u32 s{sT0}, s{sG}, {1 + i}'))
        a(salu(f's_and_b32 s{sT0}, s{sT0}, 3'))
        a(salu(f's_mul_i32 s{sT0}, s{sT0}, {4 * 18432}'))
        a(salu(f's_add_u32 s{sP0 + i}, s{sT1}, s{sT0}'))
    for i in range(3):
        for tile in range(12):
            a(salu(f's_add_u32 s{sT0}, s{sP0 + i}, {tile * 1024}', sw=[sT0]))
            a(vload((i * 12 + tile) * 4, 4, OA_G, SWS, sT0, flags='sc1'))
    a(valu('v_lshrrev_b32', G0, '4', OA_G))
    a(valu('v_and_b32', G1, '15', G0))
    a(salu(f's_movk_i32 s{sT0}, 2304'))
    a(valu('v_mul_lo_u32', G1, G1, f's{sT0}'))
    a(valu('v_lshrrev_b32', G0, '4', G0))
    a(valu('v_lshl_add_u32', G1, G0, '3', G1))
    a(salu(f's_mul_i32 s{sT1}, s{sB}, {96 * 2304}'))
    a(salu(f's_mul_i32 s{sT2}, s{sBLK}, 1152'))
    a(salu(f's_add_u32 s{sT1}, s{sT1}, s{sT2}'))
    a(salu(f's_lshl_b32 s{sT2}, s{sW}, 5'))
    a(salu(f's_add_u32 s{sP0 + 3}, s{sT1}, s{sT2}'))
    a(salu(f's_lshl_b32 s{sT2}, s{sG}, 8'))
    a(salu(f's_add_u32 s{sP0 + 4}, s{sP0 + 3}, s{sT2}'))

    def finish(p, qt, srcs, sbase, coff):
        r = []
        o = OUT(p, qt)
        for sr in srcs:
            for e in range(4):
                r.append(valu('v_add_f32', o + e, o + e, sr + e))
        r.append(valu('v_cvt_pk_bf16_f32', o, o, o + 1))
        r.append(valu('v_cvt_pk_bf16_f32', o + 1, o + 2, o + 3))
        r.append(salu(f's_add_u32 s{sT0}, s{sbase}, {qt * 16 * 2304 + coff}', sw=[sT0]))
        r.append(vstore(o, 2, G1, SOUT, sT0))
        return r
    for pi, p in enumerate((6, 7)):
        for qt in range(6):
            tile = pi * 6 + qt
            s += finish(p, qt, [(i * 12 + tile) * 4 for i in range(3)], sP0 + 4, pi * 128)
    a(salu(f's_cmp_lg_u32 s{sW}, s{sG}'))
    a(branch('s_cbranch_scc1 L_done'))
    for i in range(3):
        for qt in range(6):
            a(salu(f's_add_u32 s{sT0}, s{sP0 + i}, {(12 + qt) * 1024}', sw=[sT0]))
            a(vload((i * 6 + qt) * 4, 4, OA_G, SWS, sT0, flags='sc1'))
    for qt in range(6):
        s += finish(8, qt, [(i * 6 + qt) * 4 for i in range(3)], sP0 + 3, 1024)
    return s


def gen_G():
    s = [label('L_G')]
    a = s.append
    s += g_consts()
    s += x_dma(0, False) + wq_dma(0, False) + wq_dma(1, False) + wq_dma(2, False)
    for r in range(216):
        a(valu('v_mov_b32', r, '0'))
    a(wait_vm(0))
    s += g_iter(False)
    a(salu(f's_mov_b32 s{sJ}, 1'))
    a(label('L_G_loop'))
    s += g_iter(True)
    a(salu(f's_add_u32 s{sJ}, s{sJ}, 1'))
    a(salu(f's_cmp_lt_u32 s{sJ}, 4'))
    a(branch('s_cbranch_scc1 L_G_loop'))
    s += g_tail()
    return finalize(s)


HEADER = open('cdna_kernels/' + NAME + '.s.ref').read().split('; Override launch')[0]


def build():
    txt = HEADER
    txt += f'; @launch grid=(256,1,1) block=(512,1,1) lds={LDS_BYTES}\n'
    txt += f'''.amdgcn_target "amdgcn-amd-amdhsa--gfx950"
.text
.globl {NAME}_kernel
.p2align 8
.type {NAME}_kernel,@function
{NAME}_kernel:
'''
    txt += render(finalize(prologue()))
    txt += render(gen_A())
    txt += render(gen_G())
    txt += f'''L_done:
    s_endpgm
.section .rodata,"a"
.p2align 6
.amdhsa_kernel {NAME}_kernel
  .amdhsa_next_free_vgpr 256
  .amdhsa_next_free_sgpr 96
  .amdhsa_accum_offset 256
  .amdhsa_group_segment_fixed_size 0
  .amdhsa_kernarg_size 104
  .amdhsa_user_sgpr_count 2
  .amdhsa_user_sgpr_kernarg_segment_ptr 1
  .amdhsa_system_sgpr_workgroup_id_x 1
  .amdhsa_float_denorm_mode_32 3
  .amdhsa_float_denorm_mode_16_64 3
.end_amdhsa_kernel
'''
    return txt


if __name__ == '__main__':
    out = sys.argv[1] if len(sys.argv) > 1 else 'cdna_kernels/' + NAME + '.s'
    open(out, 'w').write(build())
    print('wrote', out)
```
